```python
import torch

def _softmax(x, axis=-1):
    return torch.softmax(x, dim=axis)
def _gelu(x):
    return torch.nn.functional.gelu(x, approximate="tanh")
def _silu(x):
    return torch.nn.functional.silu(x)
def _sigmoid(x):
    return torch.sigmoid(x)
def _layernorm(x, axis=-1, eps=1e-5):
    m = x.mean(dim=axis, keepdim=True)
    v = x.var(dim=axis, keepdim=True, unbiased=False)
    return (x - m) / torch.sqrt(v + eps)
def _scatter_add(tgt, idx, src, axis=0):
    return tgt.clone().index_add_(axis, idx, src)
def _segment_sum(src, seg, n):
    out = torch.zeros((n,) + src.shape[1:], dtype=src.dtype)
    return out.index_add_(0, seg, src)
def _pad(x, pw):
    flat = tuple(v for pair in reversed(pw) for v in pair)
    return torch.nn.functional.pad(x, flat)

kernel_name = 'standalone__gqa_block_cached__near_ridge'

def setup_inputs():

    _w = (lambda a: (lambda t: t.to(torch.bfloat16) if t.is_floating_point() else t)(torch.as_tensor(a)))
    B, Sq, D = 8, 256, 640
    Hq, Hkv, Sk, Dh = 32, 32, 1024, 192
    assert Hq % Hkv == 0, (Hq, Hkv)
    return {
        "x": _w((lambda *s: torch.randn(*s, dtype=torch.bfloat16) * 0.8)(B, Sq, D)),
        "k_cache": _w((lambda *s: torch.randn(*s, dtype=torch.bfloat16) * 0.8)(B, Hkv, Sk, Dh)),
        "v_cache": _w((lambda *s: torch.randn(*s, dtype=torch.bfloat16) * 0.05)(B, Hkv, Sk, Dh)),
        "wq": _w((lambda *s: torch.randn(*s, dtype=torch.bfloat16) * 0.8)(D, Hq * Dh) * (D ** -0.5)),
        "wo": _w((lambda *s: torch.randn(*s, dtype=torch.bfloat16) * 0.05)(Hq * Dh, D) * ((Hq * Dh) ** -0.5)),
    }

def reference(x, k_cache, v_cache, wq, wo):
    B, Sq, D = x.shape
    Hq, Dh = 32, 192
    Hkv = k_cache.shape[1]
    rep = Hq // Hkv
    q = (lambda x, *d: x.permute(*d))((x @ wq).reshape(B, Sq, Hq, Dh), 0, 2, 1, 3)
    k = (lambda x, n, axis: torch.repeat_interleave(x, n, dim=axis))(k_cache, rep, axis=1)
    v = (lambda x, n, axis: torch.repeat_interleave(x, n, dim=axis))(v_cache, rep, axis=1)
    scores = torch.einsum("bhqd,bhkd->bhqk", q, k) * (Dh ** -0.5)
    p = _softmax(scores, axis=-1)
    o = torch.einsum("bhqk,bhkd->bhqd", p, v)
    return (lambda x, *d: x.permute(*d))(o, 0, 2, 1, 3).reshape(B, Sq, Hq * Dh) @ wo
```

```python
import re

REG_RE = re.compile(r'^(-|\|)?(abs\()?([vas])(\d+)\)?\|?$')
RNG_RE = re.compile(r'^(-)?([vas])\[(\d+):(\d+)\]$')

def regs_of(op):
    op = op.strip()
    m = RNG_RE.match(op)
    if m:
        return [(m.group(2), i) for i in range(int(m.group(3)), int(m.group(4)) + 1)]
    m = REG_RE.match(op)
    if m:
        return [(m.group(3), int(m.group(4)))]
    if op == 'vcc':
        return [('x', 'vcc')]
    if op == 'exec':
        return [('x', 'exec')]
    if op == 'm0':
        return [('x', 'm0')]
    return []

TRANS = ('v_exp_f32', 'v_log_f32', 'v_rcp_f32', 'v_rsq_f32', 'v_sqrt_f32', 'v_sin_f32', 'v_cos_f32')

class I:
    __slots__ = ('text', 'mn', 'kind', 'rd', 'wr', 'tag', 'need', 'passes', 'A', 'B', 'C', 'D', 'key', 'nstates', 'store_data')
    def __init__(self, text, tag=None):
        self.text = text
        self.tag = tag
        self.need = None
        self.key = None
        self.passes = 0
        self.A = self.B = self.C = self.D = []
        self.store_data = []
        self.nstates = 1
        t = text.split(';')[0].strip()
        if t.endswith(':') or t == '' or t.startswith('.'):
            self.mn = ''; self.kind = 'label'; self.rd = []; self.wr = []; self.nstates = 0
            return
        parts = t.split(None, 1)
        mn = parts[0]
        self.mn = mn
        rest = parts[1] if len(parts) > 1 else ''
        ops = [o.strip() for o in rest.split(',')] if rest else []
        mods = []
        if ops:
            sp = ops[-1].split()
            ops[-1] = sp[0] if sp else ''
            mods = sp[1:]
        R = [regs_of(o) for o in ops]
        flat = lambda l: [x for y in l for x in y]
        if mn.startswith('v_mfma'):
            self.kind = 'mfma'
            self.passes = 8 if '32x32' in mn else 4
            self.D, self.A, self.B, self.C = R[0], R[1], R[2], R[3]
            self.wr = R[0]; self.rd = flat(R[1:])
        elif mn.startswith('ds_read') or mn.startswith('ds_bpermute') or mn.startswith('ds_swizzle'):
            self.kind = 'ds'; self.wr = R[0]; self.rd = flat(R[1:])
        elif mn.startswith('ds_write') or mn.startswith('ds_add'):
            self.kind = 'ds'; self.wr = []; self.rd = flat(R)
        elif mn.startswith('buffer_load') or mn.startswith('global_load'):
            self.kind = 'vmem'
            if 'lds' in mods or '_lds_' in mn:
                self.wr = []; self.rd = flat(R) + [('x', 'm0')]
            else:
                self.wr = R[0]; self.rd = flat(R[1:])
        elif mn.startswith('buffer_store') or mn.startswith('global_store'):
            self.kind = 'vmem'; self.wr = []; self.rd = flat(R)
            d = R[0] if mn.startswith('buffer') else R[1]
            if len(d) >= 3:
                self.store_data = d
        elif mn.startswith('buffer_atomic') or mn.startswith('global_atomic'):
            self.kind = 'vmem'; self.rd = flat(R)
            self.wr = R[0] if 'sc0' in mods else []
        elif mn in ('buffer_wbl2', 'buffer_inv'):
            self.kind = 'vmem'; self.rd = []; self.wr = []
        elif mn.startswith('s_load') or mn.startswith('s_memtime') or mn.startswith('s_memrealtime') or mn.startswith('s_buffer_load'):
            self.kind = 'smem'; self.wr = R[0]; self.rd = flat(R[1:])
        elif mn == 's_waitcnt':
            self.kind = 'wait'; self.rd = []; self.wr = []
        elif mn == 's_nop':
            self.kind = 'nop'; self.rd = []; self.wr = []; self.nstates = int(ops[0], 0) + 1
        elif mn == 's_barrier':
            self.kind = 'barrier'; self.rd = []; self.wr = []
        elif mn.startswith('s_cbranch') or mn in ('s_branch', 's_endpgm', 's_setprio', 's_sleep', 's_setpc_b64', 's_call_b64'):
            self.kind = 'branch'; self.wr = []; self.rd = []
            if 'vcc' in mn: self.rd = [('x', 'vcc')]
            if mn == 's_call_b64': self.wr = R[0]
            if mn == 's_setpc_b64': self.rd = R[0]
        elif mn.startswith('s_cmp'):
            self.kind = 'salu'; self.wr = []; self.rd = flat(R)
        elif mn.startswith('s_'):
            self.kind = 'salu'; self.wr = R[0]; self.rd = flat(R[1:])
            if mn in ('s_addk_i32', 's_mulk_i32'): self.rd = self.rd + R[0]
        elif mn.startswith('v_'):
            self.kind = 'trans' if any(mn.startswith(x) for x in TRANS) else 'valu'
            self.wr = R[0]; self.rd = flat(R[1:])
            if mn.startswith('v_permlane') or mn.startswith('v_swap'):
                self.wr = R[0] + R[1]; self.rd = R[0] + R[1]
            if mn.startswith('v_fmac') or mn.startswith('v_pk_fmac') or mn.startswith('v_dot2c'):
                self.rd = self.rd + R[0]
            if mn.startswith('v_add_co') or mn.startswith('v_addc_co') or mn.startswith('v_sub_co'):
                self.wr = R[0] + R[1]; self.rd = flat(R[2:])
            if mn.startswith('v_cndmask') and len(ops) == 3:
                self.rd = self.rd + [('x', 'vcc')]
        else:
            raise ValueError('unknown instruction: ' + text)

class W:
    def __init__(self, cnt, need, key=None):
        self.cnt = cnt
        self.need = need if isinstance(need, (list, tuple, set)) else [need]
        self.key = key
        self.val = None

class Seg:
    def __init__(self, name):
        self.name = name
        self.items = []
    def e(self, text, tag=None):
        self.items.append(I(text, tag))
    def w(self, cnt, need):
        self.items.append(W(cnt, need))
    def add(self, items):
        for x in items:
            self.items.append(I(x) if isinstance(x, str) else x)

def resolve_waits(trace):
    best = {}
    def sim(final):
        fifo = {'vm': [], 'lgkm': []}
        for seg in trace:
            wi = 0
            for it in seg.items:
                if isinstance(it, W):
                    k = (seg.name, wi); wi += 1
                    f = fifo[it.cnt]
                    last = -1
                    for idx, tg in enumerate(f):
                        if tg in it.need or 'ALL' in it.need:
                            last = idx
                    n = None if last < 0 else len(f) - 1 - last
                    if not final:
                        if n is not None:
                            best[k] = n if best.get(k) is None else min(best[k], n)
                        else:
                            best.setdefault(k, None)
                        use = n
                    else:
                        use = best[k]
                        it.val = use
                        assert n is None or (use is not None and use <= n)
                    if use is not None and len(f) > use:
                        del f[:len(f) - use]
                elif it.kind == 'vmem':
                    fifo['vm'].append(it.tag)
                    assert len(fifo['vm']) <= 63, ('vmcnt overflow', seg.name, it.text)
                elif it.kind == 'ds':
                    fifo['lgkm'].append(it.tag)
                    assert len(fifo['lgkm']) <= 15, ('lgkmcnt overflow', seg.name, it.text)
                elif it.kind == 'wait':
                    m = re.search(r'vmcnt\((\d+)\)', it.text)
                    if m and len(fifo['vm']) > int(m.group(1)):
                        del fifo['vm'][:len(fifo['vm']) - int(m.group(1))]
                    m = re.search(r'lgkmcnt\((\d+)\)', it.text)
                    if m and len(fifo['lgkm']) > int(m.group(1)):
                        del fifo['lgkm'][:len(fifo['lgkm']) - int(m.group(1))]
    sim(False)
    sim(True)
    for seg in trace:
        out = []
        for it in seg.items:
            if isinstance(it, W):
                if it.val is not None:
                    nm = 'vmcnt' if it.cnt == 'vm' else 'lgkmcnt'
                    out.append(I('s_waitcnt %s(%d)' % (nm, it.val)))
            else:
                out.append(it)
        seg.items = out

def check_same(trace):
    first = {}
    for seg in trace:
        txt = [i.text for i in seg.items]
        if seg.name in first:
            if txt != first[seg.name]:
                for a, b in zip(txt, first[seg.name]):
                    if a != b:
                        raise AssertionError('segment %s differs: %r vs %r' % (seg.name, a, b))
                raise AssertionError('segment %s differs in length' % seg.name)
        else:
            first[seg.name] = txt

def hazards(trace, fix=True, verbose=False):
    def walk():
        probs = []
        hist = []
        pos = 0
        out_ds = []; out_vm = []; out_sm = []
        for seg in trace:
            for idx, it in enumerate(seg.items):
                if it.kind == 'label':
                    continue
                need = 0; why = ''
                rd = set(it.rd); wr = set(it.wr)
                isvalu = it.kind in ('valu', 'trans')
                def req(n, p, reason):
                    nonlocal need, why
                    have = pos - p - 1
                    if n - have > need:
                        need = n - have; why = reason + ' | ' + it.text
                for (h, p) in hist[-40:]:
                    hw = set(h.wr)
                    hvalu = h.kind in ('valu', 'trans')
                    if hvalu:
                        vw = {r for r in hw if r[0] in 'va'}
                        sw = {r for r in hw if r[0] == 's' or r == ('x', 'vcc')}
                        if it.kind == 'mfma' and vw & rd: req(2, p, 'valu->mfma')
                        if it.mn.startswith('v_permlane') and vw & rd: req(2, p, 'valu->permlane')
                        if (it.mn.startswith('v_readlane') or it.mn.startswith('v_readfirstlane')) and vw & rd: req(1, p, 'valu->readlane')
                        if h.kind == 'trans' and it.kind in ('valu', 'mfma', 'vmem', 'ds') and vw & rd: req(1, p, 'trans->valu')
                        if isvalu and sw & rd: req(2, p, 'valu sgpr->valu')
                        if it.kind == 'vmem' and sw & rd: req(5, p, 'valu sgpr->vmem')
                        if ('x', 'exec') in hw and it.kind == 'mfma': req(4, p, 'exec->mfma')
                    if h.kind == 'salu' and ('x', 'm0') in hw and it.kind == 'vmem' and ('x', 'm0') in rd:
                        req(1, p, 'm0->ldsdma')
                    if h.kind == 'mfma':
                        D = set(h.D)
                        big = 12 if h.passes == 8 else 8
                        if it.kind == 'mfma':
                            if D & (set(it.A) | set(it.B)): req(big, p, 'mfma D->A/B')
                            if D & set(it.C) and not (it.C == h.D and it.passes == h.passes):
                                req(big - 2, p, 'mfma D->C overlap')
                            if D & set(it.D) and not (it.C == h.D and it.D == h.D and it.passes == h.passes):
                                req(big - 2, p, 'mfma D->D (waw)')
                        elif isvalu or it.kind in ('vmem', 'ds'):
                            if D & (rd | wr): req(big, p, 'mfma D->valu/mem')
                        if isvalu and set(h.C) & wr: req(7 if h.passes == 8 else 3, p, 'mfma C war')
                    if h.store_data and set(h.store_data) & wr and it.kind != 'mfma':
                        req(2, p, 'store data war')
                if need > 0:
                    probs.append((seg, idx, need, why))
                    pos += need
                touched = rd | wr
                for lst, nm in ((out_ds, 'ds'), (out_vm, 'vm'), (out_sm, 'smem')):
                    for o in lst:
                        if set(o.wr) & touched:
                            raise AssertionError('use of outstanding %s result: %s  (producer %s) in %s' % (nm, it.text, o.text, seg.name))
                if it.kind == 'ds': out_ds.append(it)
                if it.kind == 'vmem': out_vm.append(it)
                if it.kind == 'smem': out_sm.append(it)
                if it.kind == 'wait':
                    m = re.search(r'vmcnt\((\d+)\)', it.text)
                    if m and len(out_vm) > int(m.group(1)): del out_vm[:len(out_vm) - int(m.group(1))]
                    m = re.search(r'lgkmcnt\((\d+)\)', it.text)
                    if m:
                        n = int(m.group(1))
                        if n == 0: out_sm.clear()
                        elif out_sm: raise AssertionError('counted lgkmcnt with smem outstanding: ' + seg.name)
                        if len(out_ds) > n: del out_ds[:len(out_ds) - n]
                hist.append((it, pos))
                pos += it.nstates
        return probs
    total = 0
    while True:
        probs = walk()
        if not probs:
            return total
        if not fix:
            for seg, idx, need, why in probs: print('HAZARD', seg.name, idx, need, why)
            raise AssertionError('hazards')
        seg, idx, need, why = probs[0]
        if verbose: print('nop %d in %s[%d]: %s' % (need, seg.name, idx, why))
        total += 1
        for s in trace:
            if s.name == seg.name:
                n = need
                ins = []
                while n > 0:
                    k = min(n, 16); ins.append(I('s_nop %d' % (k - 1))); n -= k
                s.items[idx:idx] = ins

def emit(trace):
    seen = set(); out = []
    for seg in trace:
        if seg.name in seen: continue
        seen.add(seg.name)
        out.append('; ---- %s' % seg.name)
        for it in seg.items:
            out.append(it.text if it.kind == 'label' else '    ' + it.text)
    return out

def interleave(mfmas, gaps):
    out = []
    for i, m in enumerate(mfmas):
        out.extend(m)
        if i < len(gaps): out.extend(gaps[i])
    return out
```

```python
import sys, math, struct
from asmlib import *

NAME = 'standalone__gqa_block_cached__near_ridge'
STAMP = '--stamp' in sys.argv
WS_O = 0
WS_WO = 25165824
WS_STAMP = 40 * 1024 * 1024
WS_BYTES = 402653184

def f32bits(x):
    return struct.unpack('<I', struct.pack('<f', x))[0]

SCALE = math.log2(math.e) / math.sqrt(192.0)
THR = 8.0 / SCALE

def kernel_header(name):
    return ['.globl %s' % name, '.p2align 8', '.type %s,@function' % name, '%s:' % name]

def kernel_desc(name, vgpr, sgpr, accum):
    return ['.p2align 6', '.amdhsa_kernel %s' % name,
            '  .amdhsa_next_free_vgpr %d' % vgpr, '  .amdhsa_next_free_sgpr %d' % sgpr,
            '  .amdhsa_accum_offset %d' % accum, '  .amdhsa_group_segment_fixed_size 0',
            '  .amdhsa_kernarg_size 64', '  .amdhsa_user_sgpr_count 2',
            '  .amdhsa_user_sgpr_kernarg_segment_ptr 1', '  .amdhsa_system_sgpr_workgroup_id_x 1',
            '.end_amdhsa_kernel']

def srd(seg, d, lo, hi, off, nbytes):
    seg.e('s_add_u32 s%d, s%d, %s' % (d, lo, off))
    seg.e('s_addc_u32 s%d, s%d, 0' % (d + 1, hi))
    seg.e('s_and_b32 s%d, s%d, 0xffff' % (d + 1, d + 1))
    seg.e('s_mov_b32 s%d, %d' % (d + 2, nbytes))
    seg.e('s_mov_b32 s%d, 0x20000' % (d + 3))

def finish(trace, verbose=False):
    resolve_waits(trace)
    n = hazards(trace, fix=True, verbose=verbose)
    check_same(trace)
    return emit(trace)

def gen_k0(name):
    s = Seg('k0')
    s.add(kernel_header(name))
    s.e('s_cmp_ge_u32 s2, 256')
    s.e('s_cbranch_scc1 K0_END')
    s.e('s_load_dwordx16 s[4:19], s[0:1], 0')
    s.e('v_lshrrev_b32 v1, 6, v0')
    s.e('v_and_b32 v2, 63, v0')
    s.e('s_nop 0')
    s.e('v_readfirstlane_b32 s3, v1')
    s.e('s_lshr_b32 s20, s2, 3')
    s.e('s_and_b32 s21, s2, 7')
    s.e('s_mul_i32 s22, s20, %d' % (192 * 1280))
    s.e('s_mul_i32 s23, s21, 160')
    s.e('s_add_u32 s22, s22, s23')
    s.e('s_sub_u32 s23, %d, s22' % (6144 * 1280))
    s.e('s_waitcnt lgkmcnt(0)')
    srd(s, 24, 12, 13, 's22', 0)
    s.e('s_mov_b32 s26, s23')
    srd(s, 28, 18, 19, WS_WO, 7864320)
    s.e('s_lshl_b32 s32, s3, 13')
    for i in range(8):
        s.e('s_lshl_b32 s33, s3, 9')
        s.e('s_add_u32 s33, s33, %d' % (i * 64))
        s.e('v_add_u32 v3, s33, v2')
        s.e('v_mul_u32_u24 v4, 6554, v3')
        s.e('v_lshrrev_b32 v4, 16, v4')
        s.e('v_mul_u32_u24 v5, 10, v4')
        s.e('v_sub_u32 v5, v3, v5')
        s.e('v_mul_u32_u24 v4, 1280, v4')
        s.e('v_lshl_add_u32 v4, v5, 4, v4')
        s.e('s_add_u32 m0, s32, %d' % (i * 1024))
        s.e('buffer_load_dwordx4 v4, s[24:27], 0 offen lds', tag='wo')
    s.e('v_lshrrev_b32 v3, 5, v2')
    s.e('v_lshlrev_b32 v3, 4, v3')
    s.e('v_bfe_u32 v4, v2, 4, 1')
    s.e('v_lshl_add_u32 v3, v4, 2, v3')
    s.e('v_bfe_u32 v4, v2, 2, 2')
    s.e('v_add_u32 v3, v3, v4')
    s.e('v_mul_u32_u24 v3, 160, v3')
    s.e('v_and_b32 v4, 3, v2')
    s.e('v_lshl_add_u32 v3, v4, 3, v3')
    s.e('v_lshlrev_b32 v6, 4, v2')
    s.w('vm', 'ALL')
    s.e('s_barrier')
    for i in range(8):
        s.e('s_add_u32 s33, s3, %d' % (4 * i))
        s.e('s_cmp_ge_u32 s33, 30')
        s.e('s_cbranch_scc1 K0_END')
        s.e('s_mul_i32 s34, s33, 52')
        s.e('s_lshr_b32 s34, s34, 8')
        s.e('s_mul_i32 s35, s34, 5')
        s.e('s_sub_u32 s35, s33, s35')
        s.e('s_mul_i32 s36, s34, %d' % (32 * 160))
        s.e('s_lshl_b32 s37, s35, 5')
        s.e('s_add_u32 s36, s36, s37')
        s.e('v_add_u32 v4, s36, v3')
        s.e('ds_read_b64_tr_b16 v[8:9], v4', tag='r')
        s.e('ds_read_b64_tr_b16 v[10:11], v4 offset:%d' % (8 * 160), tag='r')
        s.e('s_mul_i32 s36, s21, 5')
        s.e('s_add_u32 s36, s36, s35')
        s.e('s_mul_i32 s36, s36, 192')
        s.e('s_mul_i32 s37, s20, 6')
        s.e('s_add_u32 s36, s36, s37')
        s.e('s_add_u32 s36, s36, s34')
        s.e('s_lshl_b32 s36, s36, 10')
        s.w('lgkm', 'ALL')
        s.e('buffer_store_dwordx4 v[8:11], v6, s[28:31], s36 offen')
        s.e('s_nop 1')
    s.e('K0_END:')
    s.e('s_endpgm')
    return finish([s]), kernel_desc(name, 16, 40, 16)

def gen_k2(name):
    DEPTH = 6
    FR = 16
    def frag(step, i):
        b = FR + (step % DEPTH) * 36 + i * 4
        return 'v[%d:%d]' % (b, b + 3)
    def loads(seg, step, sofs):
        for i in range(4):
            seg.e('buffer_load_dwordx4 %s, v%d, s[24:27], %s offen offset:%d' % (frag(step, i), 2 + i, sofs[0], sofs[1]), tag=('f', step))
        for j in range(5):
            seg.e('buffer_load_dwordx4 %s, v%d, s[28:31], %s offen offset:%d' % (frag(step, 4 + j), 2 + j, sofs[0], sofs[1]), tag=('f', step))
    tr = []
    s = Seg('k2_pro'); tr.append(s)
    s.add(kernel_header(name))
    s.e('s_cmp_ge_u32 s2, 256')
    s.e('s_cbranch_scc1 K2_END')
    s.e('s_load_dwordx16 s[4:19], s[0:1], 0')
    s.e('v_lshrrev_b32 v1, 6, v0')
    s.e('v_and_b32 v0, 63, v0')
    s.e('s_nop 0')
    s.e('v_readfirstlane_b32 s3, v1')
    s.e('s_and_b32 s20, s2, 7')
    s.e('s_lshr_b32 s21, s2, 6')
    s.e('s_bfe_u32 s22, s2, 0x30003')
    s.e('s_lshl_b32 s23, s20, 2')
    s.e('s_add_u32 s23, s23, s21')
    s.e('s_mul_i32 s23, s23, %d' % (4 * 196608))
    s.e('s_mul_i32 s32, s22, %d' % (5 * 196608))
    s.e('s_add_u32 s32, s32, %d' % WS_WO)
    s.e('v_lshlrev_b32 v2, 4, v0')
    for i in range(1, 5):
        s.e('v_add_u32 v%d, %d, v2' % (2 + i, i * 196608))
    s.e('s_mul_i32 s33, s3, %d' % (48 * 1024))
    s.e('s_add_u32 s34, s33, 4096')
    s.e('s_waitcnt lgkmcnt(0)')
    srd(s, 24, 18, 19, 's23', 4 * 196608)
    srd(s, 28, 18, 19, 's32', 5 * 196608)
    def sofs(k):
        return ('s33', k * 1024) if k < 4 else ('s34', (k - 4) * 1024)
    for k in range(DEPTH):
        loads(s, k, sofs(k))
    for r in range(80):
        s.e('v_accvgpr_write_b32 a%d, 0' % r)
    s.e('s_mov_b32 s35, 0')
    for it in range(8):
        s = Seg('k2_loop'); tr.append(s)
        s.e('K2_LOOP:')
        s.e('s_add_u32 s33, s33, %d' % (DEPTH * 1024))
        s.e('s_add_u32 s35, s35, 1')
        s.e('s_cmp_eq_u32 s35, 8')
        s.e('s_cselect_b32 s33, 0x40000000, s33')
        s.e('s_add_u32 s34, s33, 4096')
        for k in range(DEPTH):
            step = it * DEPTH + k
            s.w('vm', [('f', step)])
            for i in range(4):
                for j in range(5):
                    a = (i * 5 + j) * 4
                    s.e('v_mfma_f32_16x16x32_bf16 a[%d:%d], %s, %s, a[%d:%d]' % (a, a + 3, frag(step, 4 + j), frag(step, i), a, a + 3))
            loads(s, step + DEPTH, sofs(k))
        s.e('s_cmp_lt_u32 s35, 8')
        s.e('s_cbranch_scc1 K2_LOOP')
    s = Seg('k2_epi'); tr.append(s)
    s.e('s_mul_i32 s36, s3, 20480')
    s.e('v_add_u32 v8, s36, v2')
    s.e('s_mul_i32 s36, s3, 5120')
    s.e('v_add_u32 v9, s36, v2')
    s.e('v_add_u32 v12, 40960, v9')
    s.e('s_lshl_b32 s36, s20, 8')
    s.e('s_lshl_b32 s37, s21, 6')
    s.e('s_add_u32 s36, s36, s37')
    s.e('s_lshl_b32 s37, s3, 4')
    s.e('s_add_u32 s36, s36, s37')
    s.e('s_mul_i32 s36, s36, 1280')
    s.e('s_mul_i32 s37, s22, 160')
    s.e('s_add_u32 s36, s36, s37')
    srd(s, 40, 14, 15, 0, 2048 * 1280)
    s.e('v_and_b32 v10, 15, v0')
    s.e('v_mul_u32_u24 v10, 1280, v10')
    s.e('v_lshrrev_b32 v11, 4, v0')
    s.e('v_lshl_add_u32 v10, v11, 3, v10')
    s.w('vm', 'ALL')
    for blk in range(20):
        s.e('ds_write_b128 v8, a[%d:%d] offset:%d' % (blk * 4, blk * 4 + 3, blk * 1024), tag='w')
        if blk % 8 == 7: s.w('lgkm', 'ALL')
    s.w('lgkm', 'ALL')
    s.e('s_barrier')
    for j in range(5):
        for w in range(4):
            b = 16 + (j * 4 + w) * 4
            s.e('ds_read_b128 v[%d:%d], v%d offset:%d' % (b, b + 3, 9 if w < 2 else 12, (w % 2) * 20480 + j * 1024), tag=('r', j))
        if j % 2 == 1 or j == 4:
            for jj in ([j - 1, j] if j % 2 == 1 else [j]):
                s.w('lgkm', [('r', jj)])
                b = 16 + jj * 16
                for r in range(4):
                    s.e('v_add_f32 v%d, v%d, v%d' % (b + r, b + r, b + 4 + r))
                    s.e('v_add_f32 v%d, v%d, v%d' % (b + 8 + r, b + 8 + r, b + 12 + r))
                for r in range(4):
                    s.e('v_add_f32 v%d, v%d, v%d' % (b + r, b + r, b + 8 + r))
                s.e('v_cvt_pk_bf16_f32 v%d, v%d, v%d' % (b, b, b + 1))
                s.e('v_cvt_pk_bf16_f32 v%d, v%d, v%d' % (b + 1, b + 2, b + 3))
                s.e('buffer_store_dwordx2 v[%d:%d], v10, s[40:43], s36 offen offset:%d' % (b, b + 1, jj * 32))
    s.e('K2_END:')
    s.e('s_endpgm')
    return finish(tr), kernel_desc(name, 232 + 80, 48, 232)

vKD, vVD, vWD, vXD = 1, 4, 7, 10
vKR, vVR, vWR, vXR = 12, 16, 18, 20
vMC, vTH, vL, vMX = 24, 26, 28, 30
vQ, vS, vP = 32, 128, 192
vACC = 32
vAL = 224
vT = 226
aFR = 192
sW = 3
sX, sWQ, sK, sV, sO = 20, 24, 28, 32, 36
sKoff, sVoff, sKm0, sVm0, sKd, sVd = 40, 41, 42, 43, 44, 45
sC, sCnt, sPend, sWQoff, sXoff, sT0, sT1, sWm0, sXm0 = 46, 47, 48, 49, 50, 51, 52, 53, 54
sWrap = 55
sRet = 56
sCmp = 58
sSt = 60
LDS_WQ = 49152
LDS_X = 98304

def S(par, qb, r=None):
    b = vS + par * 32 + qb * 16
    return b if r is None else b + r
def P(par, qb, ks):
    return vP + par * 16 + qb * 8 + ks * 4
def Qf(qb, ks):
    return vQ + (qb * 12 + ks) * 4
def rng(p, b, n=4):
    return '%s[%d:%d]' % (p, b, b + n - 1)

nstamp = [0]
def stamp(seg):
    if not STAMP: return
    k = nstamp[0]; nstamp[0] += 1
    seg.e('s_memtime s[%d:%d]' % (sSt + 2 * k, sSt + 2 * k + 1))
    seg.e('s_waitcnt lgkmcnt(0)')

def dma_tile(srdreg, voff, soff, m0val, tag):
    out = [I('s_mov_b32 m0, %s' % m0val)]
    for i in range(3):
        out.append(I('buffer_load_dwordx4 v%d, s[%d:%d], %s offen offset:%d lds' % (voff + i, srdreg, srdreg + 3, soff, i * 1024), tag=tag))
    return out

def gen_k1(name):
    tr = []
    s = Seg('k1_pro'); tr.append(s)
    s.add(kernel_header(name))
    s.e('s_cmp_ge_u32 s2, 256')
    s.e('s_cbranch_scc1 K1_END')
    s.e('s_load_dwordx16 s[4:19], s[0:1], 0')
    stamp(s)
    s.e('v_lshrrev_b32 v1, 6, v0')
    s.e('v_and_b32 v0, 63, v0')
    s.e('s_nop 0')
    s.e('v_readfirstlane_b32 s%d, v1' % sW)
    s.e('s_and_b32 s40, s2, 1')
    s.e('s_lshl_b32 s40, s40, 2')
    s.e('s_bfe_u32 s41, s2, 0x20003')
    s.e('s_add_u32 s40, s40, s41')
    s.e('s_bfe_u32 s41, s2, 0x20001')
    s.e('s_lshl_b32 s41, s41, 3')
    s.e('s_lshr_b32 s42, s2, 5')
    s.e('s_add_u32 s41, s41, s42')
    s.e('s_mul_i32 s42, s40, 327680')
    s.e('s_mul_i32 s43, s41, 384')
    s.e('s_lshl_b32 s44, s40, 5')
    s.e('s_add_u32 s44, s44, s41')
    s.e('s_mul_i32 s44, s44, 393216')
    s.e('s_lshl_b32 s45, s40, 4')
    s.e('s_lshl_b32 s46, s%d, 2' % sW)
    s.e('s_add_u32 s45, s45, s46')
    s.e('s_mul_i32 s45, s45, 192')
    s.e('s_mul_i32 s46, s41, 6')
    s.e('s_add_u32 s45, s45, s46')
    s.e('s_lshl_b32 s45, s45, 10')
    T = 24
    s.e('v_lshrrev_b32 v%d, 3, v0' % T)
    s.e('s_lshl_b32 s46, s%d, 6' % sW)
    s.e('v_add_u32 v%d, s46, v%d' % (T, T))
    s.e('v_mul_u32_u24 v%d, 1280, v%d' % (T, T))
    s.e('v_and_b32 v%d, 7, v0' % (T + 1))
    s.e('v_lshrrev_b32 v%d, 4, v0' % (T + 2))
    s.e('v_xor_b32 v%d, v%d, v%d' % (T + 1, T + 1, T + 2))
    s.e('v_lshl_add_u32 v%d, v%d, 4, v%d' % (vXD, T + 1, T))
    s.e('v_xor_b32 v%d, 64, v%d' % (vXD + 1, vXD))
    s.e('s_mul_i32 s46, s%d, 192' % sW)
    for i in range(3):
        s.e('s_add_u32 s47, s46, %d' % (i * 64))
        s.e('v_add_u32 v%d, s47, v0' % T)
        s.e('v_mul_u32_u24 v%d, 2731, v%d' % (T + 1, T))
        s.e('v_lshrrev_b32 v%d, 16, v%d' % (T + 1, T + 1))
        s.e('v_mul_u32_u24 v%d, 24, v%d' % (T + 2, T + 1))
        s.e('v_sub_u32 v%d, v%d, v%d' % (T + 2, T, T + 2))
        s.e('v_bfe_u32 v%d, v%d, 1, 3' % (T + 3, T + 1))
        s.e('v_xor_b32 v%d, v%d, v%d' % (T + 3, T + 3, T + 2))
        s.e('v_bfe_u32 v%d, v%d, 1, 1' % (T + 4, T + 1))
        s.e('v_lshlrev_b32 v%d, 2, v%d' % (T + 4, T + 4))
        s.e('v_xor_b32 v%d, v%d, v%d' % (T + 4, T + 4, T + 2))
        s.e('v_mul_u32_u24 v%d, 384, v%d' % (T + 5, T + 1))
        s.e('v_subrev_u32 v%d, %d, v%d' % (T + 5, i * 1024, T + 5))
        s.e('v_lshl_add_u32 v%d, v%d, 4, v%d' % (vKD + i, T + 3, T + 5))
        s.e('v_lshl_add_u32 v%d, v%d, 4, v%d' % (vVD + i, T + 4, T + 5))
        s.e('v_mul_u32_u24 v%d, 12288, v%d' % (T + 5, T + 1))
        s.e('v_subrev_u32 v%d, %d, v%d' % (T + 5, i * 1024, T + 5))
        s.e('v_lshl_add_u32 v%d, v%d, 4, v%d' % (vWD + i, T + 4, T + 5))
    s.e('s_waitcnt lgkmcnt(0)')
    srd(s, sX, 4, 5, 's42', 327680)
    srd(s, sWQ, 10, 11, 's43', 639 * 12288 + 384)
    srd(s, sK, 6, 7, 's44', 393216)
    srd(s, sV, 8, 9, 's44', 393216)
    srd(s, sO, 18, 19, 's45', 3 * 196608 + 6 * 1024)
    s.e('s_mul_i32 s%d, s%d, 3072' % (sKm0, sW))
    s.e('s_add_u32 s%d, s%d, %d' % (sWm0, sKm0, LDS_WQ))
    s.e('s_lshl_b32 s%d, s%d, 14' % (sXm0, sW))
    s.e('s_add_u32 s%d, s%d, %d' % (sXm0, sXm0, LDS_X))

    def x_dma(slot, tag):
        out = []
        for i in range(8):
            if i % 4 == 0:
                out.append(I('s_add_u32 m0, s%d, %d' % (sXm0, slot * 8192 + i * 1024)))
            out.append(I('s_add_u32 s%d, s%d, %d' % (sT0, sXoff, i * 10240 - (i % 4) * 1024)))
            out.append(I('buffer_load_dwordx4 v%d, s[%d:%d], s%d offen offset:%d lds' % (vXD + (i & 1), sX, sX + 3, sT0, (i % 4) * 1024), tag=tag))
        return out
    def wq_dma(slot, tag):
        out = [I('s_add_u32 m0, s%d, %d' % (sWm0, slot * 12288))]
        for i in range(3):
            out.append(I('buffer_load_dwordx4 v%d, s[%d:%d], s%d offen offset:%d lds' % (vWD + i, sWQ, sWQ + 3, sWQoff, i * 1024), tag=tag))
        out.append(I('s_add_u32 s%d, s%d, 393216' % (sWQoff, sWQoff)))
        return out
    def kv_dma_static(which, t):
        srdreg, voff = (sK, vKD) if which == 'K' else (sV, vVD)
        out = [I('s_add_u32 m0, s%d, %d' % (sKm0, (t % 6) * 24576 + (0 if which == 'K' else 12288))),
               I('s_mov_b32 s%d, %d' % (sT1, t * 12288))]
        for i in range(3):
            out.append(I('buffer_load_dwordx4 v%d, s[%d:%d], s%d offen offset:%d lds' % (voff + i, srdreg, srdreg + 3, sT1, i * 1024), tag=(which, t)))
        return out

    s.e('s_mov_b32 s%d, 0' % sXoff)
    s.e('s_mov_b32 s%d, 0' % sWQoff)
    s.add(wq_dma(0, ('wq', 0)))
    s.add(x_dma(0, ('x', 0)))
    s.add(wq_dma(1, ('wq', 1)))
    s.e('s_mov_b32 s%d, 128' % sXoff)
    s.add(x_dma(1, ('x', 1)))
    s.add(wq_dma(2, ('wq', 2)))
    for which, t in (('K', 0), ('K', 1), ('V', 0), ('V', 1)):
        s.add(kv_dma_static(which, t))
    s.e('v_and_b32 v%d, 31, v0' % T)
    s.e('v_lshrrev_b32 v%d, 5, v0' % (T + 1))
    s.e('v_bfe_u32 v%d, v0, 1, 3' % (T + 2))
    s.e('v_xor_b32 v%d, v%d, v%d' % (T + 2, T + 2, T + 1))
    s.e('v_mul_u32_u24 v%d, 384, v%d' % (T + 3, T))
    s.e('v_lshlrev_b32 v%d, 7, v%d' % (T + 4, T))
    s.e('v_add_u32 v%d, s%d, v%d' % (T + 4, sXm0, T + 4))
    for b in range(4):
        s.e('v_xor_b32 v%d, %d, v%d' % (T + 5, 2 * b, T + 2))
        s.e('v_lshl_add_u32 v%d, v%d, 4, v%d' % (vKR + b, T + 5, T + 3))
        s.e('v_lshl_add_u32 v%d, v%d, 4, v%d' % (vXR + b, T + 5, T + 4))
    s.e('v_bfe_u32 v%d, v0, 2, 2' % T)
    s.e('v_lshl_add_u32 v%d, v%d, 2, v%d' % (T + 2, T + 1, T))
    s.e('v_lshl_add_u32 v%d, v%d, 3, v%d' % (T + 3, T + 1, T))
    s.e('v_mul_u32_u24 v%d, 384, v%d' % (T + 2, T + 2))
    s.e('v_mul_u32_u24 v%d, 384, v%d' % (T + 3, T + 3))
    s.e('v_bfe_u32 v%d, v0, 4, 1' % (T + 4))
    s.e('v_lshlrev_b32 v%d, 5, v%d' % (T + 4, T + 4))
    s.e('v_bfe_u32 v%d, v0, 3, 1' % (T + 5))
    s.e('v_lshl_add_u32 v%d, v%d, 6, v%d' % (T + 4, T + 5, T + 4))
    s.e('v_and_b32 v%d, 3, v0' % (T + 5))
    s.e('v_lshl_add_u32 v%d, v%d, 3, v%d' % (T + 6, T + 5, T + 4))
    s.e('v_add3_u32 v%d, v%d, v%d, 0' % (vVR, T + 6, T + 2))
    s.e('v_add_u32 v%d, 12288, v%d' % (vVR, vVR))
    s.e('v_xor_b32 v%d, 64, v%d' % (vVR + 1, vVR))
    s.e('v_and_b32 v%d, 1, v0' % (T + 5))
    s.e('v_lshl_add_u32 v%d, v%d, 4, v%d' % (T + 6, T + 5, T + 4))
    s.e('v_bfe_u32 v%d, v0, 1, 1' % (T + 5))
    s.e('v_lshl_add_u32 v%d, v%d, 3, v%d' % (T + 6, T + 5, T + 6))
    s.e('v_add3_u32 v%d, v%d, v%d, 0' % (vWR, T + 6, T + 3))
    s.e('v_add_u32 v%d, %d, v%d' % (vWR, LDS_WQ, vWR))
    s.e('v_xor_b32 v%d, 64, v%d' % (vWR + 1, vWR))
    s.e('s_mov_b32 s%d, 0x%x' % (sC, f32bits(SCALE)))
    s.e('s_mov_b32 s%d, 0' % sCnt)
    s.e('s_mov_b32 s%d, 0' % sPend)

    def xreg(J, qb, sp):
        idx = (qb * 4 + sp) * 4
        return rng('v', 224 + idx) if J % 2 == 0 else rng('a', 224 + idx)
    def x_reads(J):
        out = []
        for sp in range(4):
            for qb in range(2):
                out.append(I('ds_read_b128 %s, v%d offset:%d' % (xreg(J, qb, sp), vXR + sp, (J % 2) * 8192 + qb * 4096), tag=('xr', J, qb, sp)))
        return out
    def wfrag(n):
        return aFR + (n % 8) * 4
    def w_reads(n):
        j, r = divmod(n, 12); st, db = divmod(r, 6)
        b = wfrag(n)
        off = (j % 4) * 12288 + 16 * st * 384 + (db // 2) * 128
        return [I('ds_read_b64_tr_b16 a[%d:%d], v%d offset:%d' % (b + 2 * jj, b + 2 * jj + 1, vWR + (db & 1), off + 4 * jj * 384), tag=('wr', n)) for jj in range(2)]
    WPF = 4
    s.w('vm', [('wq', 0), ('x', 0)])
    s.e('s_barrier')
    s.add(x_reads(0))
    for n in range(WPF - 1):
        s.add(w_reads(n))
    for r in range(192):
        s.e('v_mov_b32 v%d, 0' % (vACC + r))
    s.w('lgkm', [('xr', 0, 1, 3)])
    s.e('s_mov_b32 s%d, 256' % sXoff)
    s.add(x_dma(0, ('x', 2)))
    s.add(w_reads(WPF - 1))
    stamp(s)
    zero_list = list(range(192))
    for it in range(5):
        s = Seg('k1_qloop'); tr.append(s)
        s.e('K1_QLOOP:')
        for jj in range(4):
            j = it * 4 + jj
            J = j // 2
            gaps = [[] for _ in range(24)]
            mf = []
            for st in range(2):
                for db in range(6):
                    n = j * 12 + st * 6 + db
                    for qb in range(2):
                        sp = (j % 2) * 2 + st
                        pre = []
                        if qb == 0: pre.append(W('lgkm', [('wr', n)]))
                        pre.append(W('lgkm', [('xr', J, qb, sp)]))
                        a = vACC + (qb * 6 + db) * 16
                        pre.append(I('v_mfma_f32_32x32x16_bf16 %s, %s, %s, %s' % (rng('v', a, 16), rng('a', wfrag(n)), xreg(J, qb, sp), rng('v', a, 16))))
                        mf.append(pre)
                    rd = w_reads(n + WPF)
                    g = (st * 6 + db) * 2
                    gaps[g].append(rd[0]); gaps[g + 1].append(rd[1])
            gb = 2 * (12 - WPF) - 1
            gaps[gb] = gaps[gb] + [W('vm', [('wq', j + 1)]), I('s_barrier')]
            d = wq_dma((j + 3) % 4, ('wq', j + 3))
            gaps[gb + 1] += d[0:2]; gaps[gb + 3] += d[2:3]; gaps[gb + 5] += d[3:5]
            if j % 2 == 0:
                xr = x_reads(J + 1)
                gaps[0].insert(0, W('vm', [('x', J + 1)]))
                for k in range(8):
                    gaps[2 * k].append(xr[k])
            else:
                d = x_dma((J + 1) % 2, ('x', J + 3))
                pre = [I('s_add_u32 s%d, s%d, 128' % (sXoff, sXoff)), I('s_cmp_ge_u32 s%d, 1280' % sXoff),
                       I('s_cselect_b32 s%d, 0x40000000, s%d' % (sXoff, sXoff)), W('lgkm', [('xr', J + 1, 1, 3)])]
                gaps[0] += pre
                k = 0; g = 1
                while k < len(d):
                    n_take = 3 if d[k].text.startswith('s_add_u32 m0') else 2
                    gaps[g] += d[k:k + n_take]; k += n_take; g += 1
            for k in range(48):
                gaps[k // 2].append(I('v_accvgpr_write_b32 a%d, 0' % (jj * 48 + k)))
            s.add(interleave(mf, gaps))
        s.e('s_add_u32 s%d, s%d, 1' % (sCnt, sCnt))
        s.e('s_cmp_lt_u32 s%d, 5' % sCnt)
        s.e('s_cbranch_scc1 K1_QLOOP')

    s = Seg('k1_mid'); tr.append(s)
    stamp(s)
    s.e('s_waitcnt vmcnt(0) lgkmcnt(0)')
    s.e('s_barrier')
    dm = []
    for which, t in (('K', 2), ('K', 3), ('V', 2), ('K', 4), ('V', 3), ('K', 5), ('V', 4)):
        dm += kv_dma_static(which, t)
    def kfrag(n):
        return aFR + (n % 16) * 4
    def kn(t, ks):
        return 24 * (t - 1) + ks if t > 0 else ks - 12
    def k_read(t, ks):
        n = kn(t, ks)
        return [I('ds_read_b128 %s, v%d offset:%d' % (rng('a', kfrag(n)), vKR + (ks % 4), (ks // 4) * 128), tag=('fr', n))]
    def v_read(t, f):
        ks, db = divmod(f, 6)
        n = t * 24 + 12 + f
        b = kfrag(n)
        return [I('ds_read_b64_tr_b16 a[%d:%d], v%d offset:%d' % (b + 2 * jj, b + 2 * jj + 1, vVR + (db & 1), (16 * ks + 8 * jj) * 384 + (db // 2) * 128), tag=('fr', n)) for jj in range(2)]
    PF = 4
    for ks in range(PF):
        s.add(k_read(0, ks))
    cv = [I('v_cvt_pk_bf16_f32 v%d, v%d, v%d' % (vQ + i, vACC + 2 * i, vACC + 2 * i + 1)) for i in range(96)]
    k = 0
    for i in range(96):
        if i % 3 == 0 and k < len(dm):
            s.add(dm[k:k + 1]); k += 1
        s.add([cv[i]])
    s.add(dm[k:])
    s.e('s_mov_b32 s%d, %d' % (sKoff, 6 * 12288))
    s.e('s_mov_b32 s%d, %d' % (sVoff, 5 * 12288))
    s.e('s_add_u32 s%d, s%d, %d' % (sVm0, sKm0, 5 * 24576 + 12288))
    s.e('s_mov_b32 s%d, 0' % sCnt)
    s.e('v_mov_b32 v%d, 0' % vL)
    s.e('v_mov_b32 v%d, 0' % (vL + 1))

    def qk_mfmas(t):
        mf = []
        for ks in range(12):
            n = kn(t, ks)
            for qb in range(2):
                pre = [W('lgkm', [('fr', n)])] if qb == 0 else []
                d = rng('v', S(t % 2, qb), 16)
                pre.append(I('v_mfma_f32_32x32x16_bf16 %s, %s, %s, %s' % (d, rng('a', kfrag(n)), rng('v', Qf(qb, ks)), '0' if ks == 0 else d)))
                mf.append(pre)
        return mf
    def pv_mfmas(t):
        mf = []
        for f in range(12):
            ks, db = divmod(f, 6)
            n = t * 24 + 12 + f
            for qb in range(2):
                pre = [W('lgkm', [('fr', n)])] if qb == 0 else []
                d = rng('a', qb * 96 + db * 16, 16)
                pre.append(I('v_mfma_f32_32x32x16_bf16 %s, %s, %s, %s' % (d, rng('a', kfrag(n)), rng('v', P(t % 2, qb, ks)), d)))
                mf.append(pre)
        return mf
    def k_adv():
        return [I('v_add_u32 v%d, s%d, v%d' % (vKR + b, sKd, vKR + b)) for b in range(4)]
    def v_adv():
        return [I('v_add_u32 v%d, s%d, v%d' % (vVR + b, sVd, vVR + b)) for b in range(2)]
    def max_ops(par):
        out = []
        for qb in range(2):
            b = S(par, qb); m = vMX + qb
            o = [I('v_max3_f32 v%d, v%d, v%d, v%d' % (m, b, b + 1, b + 2))]
            for r in range(3, 15, 2):
                o.append(I('v_max3_f32 v%d, v%d, v%d, v%d' % (m, m, b + r, b + r + 1)))
            o.append(I('v_max_f32 v%d, v%d, v%d' % (m, m, b + 15)))
            out.append(o)
        return [x for pair in zip(out[0], out[1]) for x in pair]
    def elems(par):
        return [(0, r) for r in range(8)] + [(1, r) for r in range(8)] + [(0, r) for r in range(8, 16)] + [(1, r) for r in range(8, 16)]
    def sm_stage(par, k):
        el = elems(par); out = []
        if 0 <= k - 1 < 32:
            qb, r = el[k - 1]; out.append(I('v_exp_f32 v%d, v%d' % (S(par, qb, r), S(par, qb, r))))
        if 0 <= k < 32:
            qb, r = el[k]; out.append(I('v_fma_f32 v%d, v%d, s%d, -v%d' % (S(par, qb, r), S(par, qb, r), sC, vMC + qb)))
        if 0 <= k - 2 < 32:
            qb, r = el[k - 2]; out.append(I('v_add_f32 v%d, v%d, v%d' % (vL + qb, vL + qb, S(par, qb, r))))
            if r % 2 == 1:
                out.append(I('v_cvt_pk_bf16_f32 v%d, v%d, v%d' % (P(par, qb, r // 8) + (r % 8) // 2, S(par, qb, r - 1), S(par, qb, r))))
        return out
    NA = 14

    mf = qk_mfmas(0)
    gaps = [[] for _ in range(24)]
    for ks in range(PF, 12):
        gaps[2 * (ks - PF)] += k_read(0, ks)
    s.e('s_mov_b32 s%d, 24576' % sKd)
    s.e('s_mov_b32 s%d, %d' % (sWrap, (-5 * 24576) & 0xffffffff))
    s.e('s_mov_b32 s%d, 24576' % sVd)
    gaps[2 * (12 - PF) - 1] += k_adv()
    for ks in range(PF):
        gaps[2 * (12 - PF + ks)] += k_read(1, ks)
    s.add(interleave(mf, gaps))
    s.add(max_ops(0))
    for qb in range(2):
        s.e('v_mov_b32 v%d, v%d' % (vT + qb, vMX + qb))
    for qb in range(2):
        s.e('v_permlane32_swap_b32 v%d, v%d' % (vT + qb, vMX + qb))
    for qb in range(2):
        s.e('v_max_f32 v%d, v%d, v%d' % (vMX + qb, vMX + qb, vT + qb))
    for qb in range(2):
        s.e('v_mul_f32 v%d, s%d, v%d' % (vMC + qb, sC, vMX + qb))
        s.e('v_add_f32 v%d, 0x%x, v%d' % (vTH + qb, f32bits(THR), vMX + qb))
    for k in range(NA):
        s.add(sm_stage(0, k))
    stamp(s)

    def body(seg, t, last=False):
        par = t % 2
        L = 'E' if par == 0 else ('F' if last else 'O')
        seg.e('s_cmp_lg_u32 s%d, 0' % sPend)
        seg.e('s_cbranch_scc1 K1_SB_%s' % L)
        seg.e('K1_RB_%s:' % L)
        gaps = [[] for _ in range(24)]
        for k in range(NA, 34):
            gaps[k - NA] += sm_stage(par, k)
        if not last:
            mf = qk_mfmas(t + 1)
            for ks in range(PF, 12):
                gaps[2 * (ks - PF)] += k_read(t + 1, ks)
        else:
            mf = [[] for _ in range(24)]
        for f in range(PF):
            r = v_read(t, f)
            gaps[2 * (12 - PF + f)] += r[0:1]; gaps[2 * (12 - PF + f) + 1] += r[1:2]
        seg.add(interleave(mf, gaps))
        if not last:
            seg.w('vm', [('K', t + 2), ('V', t + 1)])
            seg.e('s_barrier')
        mf = pv_mfmas(t)
        gaps = [[] for _ in range(24)]
        for f in range(PF, 12):
            r = v_read(t, f)
            gaps[2 * (f - PF)] += r[0:1]; gaps[2 * (f - PF) + 1] += r[1:2]
        if not last:
            kd = dma_tile(sK, vKD, 's%d' % sKoff, 's%d' % sKm0, ('K', t + 6))
            vd = dma_tile(sV, vVD, 's%d' % sVoff, 's%d' % sVm0, ('V', t + 5))
            gaps[0] += kd[0:2]; gaps[1] += kd[2:3]; gaps[2] += kd[3:4]
            gaps[16] += vd[0:2]; gaps[18] += vd[2:3]; gaps[20] += vd[3:4]
            gaps[3] += [I('s_add_u32 s%d, s%d, 12288' % (sKoff, sKoff)),
                        I('s_add_u32 s%d, s%d, 1' % (sCnt, sCnt))]
            gaps[4] += [I('s_cmp_eq_u32 s%d, 5' % sCnt), I('s_cselect_b32 s%d, s%d, 24576' % (sKd, sWrap))]
            gaps[5] += [I('s_cmp_eq_u32 s%d, 6' % sCnt), I('s_cselect_b32 s%d, s%d, 24576' % (sVd, sWrap)),
                        I('s_cselect_b32 s%d, 0, s%d' % (sCnt, sCnt))]
            gaps[21] += [I('s_add_u32 s%d, s%d, 12288' % (sVm0, sKm0)),
                         I('s_add_u32 s%d, s%d, 12288' % (sVoff, sVoff)),
                         I('s_add_u32 s%d, s%d, s%d' % (sKm0, sKm0, sVd))]
            ka = k_adv()
            gaps[6] += ka[0:2]; gaps[7] += ka[2:4]
            for ks in range(PF):
                gaps[2 * (12 - PF + ks)] += k_read(t + 2, ks)
            gaps[2 * (12 - PF) + 1] += v_adv()
            mo = max_ops(1 - par)
            for k in range(16):
                gaps[3 + k // 3] += mo[k:k + 1]
            gaps[8] += [I('v_cmp_gt_f32 vcc, v%d, v%d' % (vMX, vTH)),
                        I('v_cmp_gt_f32 s[%d:%d], v%d, v%d' % (sCmp, sCmp + 1, vMX + 1, vTH + 1))]
            gaps[9] += [I('s_or_b64 vcc, vcc, s[%d:%d]' % (sCmp, sCmp + 1)),
                        I('s_cbranch_scc1 K1_SA_%s' % L), I('K1_RA_%s:' % L)]
            for k in range(NA):
                gaps[10 + k] += sm_stage(1 - par, k)
        seg.add(interleave(mf, gaps))

    for t in range(31):
        if t % 2 == 0:
            s = Seg('k1_even'); tr.append(s)
            s.e('K1_LOOP:')
            body(s, t)
            s.e('s_cmp_eq_u32 s%d, %d' % (sKoff, (30 + 7) * 12288))
            s.e('s_cbranch_scc1 K1_FINAL')
        else:
            s = Seg('k1_odd'); tr.append(s)
            body(s, t)
            s.e('s_branch K1_LOOP')
    s = Seg('k1_final'); tr.append(s)
    s.e('K1_FINAL:')
    stamp(s)
    body(s, 31, last=True)
    stamp(s)
    for qb in range(2):
        s.e('v_mov_b32 v%d, v%d' % (vT + qb, vL + qb))
    for qb in range(2):
        s.e('v_permlane32_swap_b32 v%d, v%d' % (vT + qb, vL + qb))
    for qb in range(2):
        s.e('v_add_f32 v%d, v%d, v%d' % (vL + qb, vL + qb, vT + qb))
    for qb in range(2):
        s.e('v_rcp_f32 v%d, v%d' % (vL + qb, vL + qb))
    s.e('v_bfe_u32 v1, v0, 4, 1')
    s.e('v_mul_u32_u24 v1, 196608, v1')
    s.e('v_lshrrev_b32 v2, 5, v0')
    s.e('v_lshl_add_u32 v1, v2, 8, v1')
    s.e('v_and_b32 v2, 15, v0')
    s.e('v_lshl_add_u32 v1, v2, 4, v1')
    s.e('v_add_u32 v2, %d, v1' % (2 * 196608))
    for qb in range(2):
        for db in range(6):
            tb = 32 + ((qb * 6 + db) % 4) * 24
            for r in range(16):
                s.e('v_accvgpr_read_b32 v%d, a%d' % (tb + r, qb * 96 + db * 16 + r))
            for r in range(16):
                s.e('v_mul_f32 v%d, v%d, v%d' % (tb + r, tb + r, vL + qb))
            for r in range(8):
                s.e('v_cvt_pk_bf16_f32 v%d, v%d, v%d' % (tb + 16 + r, tb + 2 * r, tb + 2 * r + 1))
            s.e('s_mov_b32 s%d, %d' % (sT0, db * 1024))
            for hh in range(2):
                s.e('buffer_store_dwordx4 %s, v%d, s[%d:%d], s%d offen offset:%d' % (rng('v', tb + 16 + 4 * hh), 1 + qb, sO, sO + 3, sT0, hh * 512))
    if STAMP:
        s.e('s_waitcnt vmcnt(0)')
        stamp(s)
        srd(s, 40, 18, 19, WS_STAMP, 256 * 4 * 64)
        s.e('s_lshl_b32 s44, s2, 2')
        s.e('s_add_u32 s44, s44, s%d' % sW)
        s.e('s_lshl_b32 s44, s44, 6')
        s.e('v_mov_b32 v1, 0')
        for k in range(nstamp[0]):
            s.e('v_mov_b32 v2, s%d' % (sSt + 2 * k))
            s.e('buffer_store_dword v2, v1, s[40:43], s44 offen offset:%d' % (4 * k))
    s.e('K1_END:')
    s.e('s_endpgm')
    main = finish(tr, verbose=True)

    out = []
    for L, par in (('E', 1), ('O', 0)):
        s = Seg('slowA_' + L)
        s.e('K1_SA_%s:' % L)
        for qb in range(2):
            s.e('v_mov_b32 v%d, v%d' % (vT + qb, vMX + qb))
        for qb in range(2):
            s.e('v_permlane32_swap_b32 v%d, v%d' % (vT + qb, vMX + qb))
        for qb in range(2):
            s.e('v_max_f32 v%d, v%d, v%d' % (vMX + qb, vMX + qb, vT + qb))
            s.e('v_mul_f32 v%d, s%d, v%d' % (vT + qb, sC, vMX + qb))
            s.e('v_max_f32 v%d, v%d, v%d' % (vT + qb, vT + qb, vMC + qb))
            s.e('v_sub_f32 v%d, v%d, v%d' % (vAL + qb, vMC + qb, vT + qb))
            s.e('v_exp_f32 v%d, v%d' % (vAL + qb, vAL + qb))
            s.e('v_mov_b32 v%d, v%d' % (vMC + qb, vT + qb))
            s.e('v_add_f32 v%d, 0x%x, v%d' % (vMX + qb, f32bits(THR), vMX + qb))
            s.e('v_max_f32 v%d, v%d, v%d' % (vTH + qb, vTH + qb, vMX + qb))
            s.e('v_mul_f32 v%d, v%d, v%d' % (vL + qb, vL + qb, vAL + qb))
        s.e('s_mov_b32 s%d, 1' % sPend)
        s.e('s_nop 1')
        s.e('s_branch K1_RA_%s' % L)
        out += finish([s])
    for L in ('E', 'O', 'F'):
        s = Seg('stubB_' + L)
        s.e('K1_SB_%s:' % L)
        s.e('s_call_b64 s[%d:%d], K1_SLOWB' % (sRet, sRet + 1))
        s.e('s_branch K1_RB_%s' % L)
        out += finish([s])
    s = Seg('slowB')
    s.e('K1_SLOWB:')
    s.e('s_nop 15')
    for qb in range(2):
        for r in range(0, 96, 4):
            for k in range(4):
                s.e('v_accvgpr_read_b32 v%d, a%d' % (vT + 2 + k, qb * 96 + r + k))
            for k in range(4):
                s.e('v_mul_f32 v%d, v%d, v%d' % (vT + 2 + k, vT + 2 + k, vAL + qb))
            for k in range(4):
                s.e('v_accvgpr_write_b32 a%d, v%d' % (qb * 96 + r + k, vT + 2 + k))
    s.e('s_mov_b32 s%d, 0' % sPend)
    s.e('s_nop 1')
    s.e('s_setpc_b64 s[%d:%d]' % (sRet, sRet + 1))
    out += finish([s])
    return main + out, kernel_desc(name, 512, 96, 256)

def main():
    hdr = open('cdna_kernels/%s.s.ref' % NAME).read().split('\n')
    hdr = [l for l in hdr if l.startswith(';') and '@launch' not in l and 'Override launch' not in l and 'grid=ceil' not in l]
    out = hdr + [
        '; @launch kernel=wo_relayout_kernel grid=(256,1,1) block=(256,1,1) lds=32768',
        '; @launch kernel=%s_kernel grid=(256,1,1) block=(256,1,1) lds=163840' % NAME,
        '; @launch kernel=oproj_kernel grid=(256,1,1) block=(256,1,1) lds=81920',
        '.amdgcn_target "amdgcn-amd-amdhsa--gfx950"', '.text']
    c0, d0 = gen_k0('wo_relayout_kernel')
    c1, d1 = gen_k1(NAME + '_kernel')
    c2, d2 = gen_k2('oproj_kernel')
    out += c0 + c1 + c2 + ['.section .rodata,"a"'] + d0 + d1 + d2
    path = sys.argv[1] if len(sys.argv) > 1 and not sys.argv[1].startswith('--') else 'cdna_kernels/%s.s' % NAME
    open(path, 'w').write('\n'.join(out) + '\n')
    print('wrote', path, len(out), 'lines')

main()
```
